```python
import torch

def _softmax(x, axis=-1):
    return torch.softmax(x, dim=axis)
def _gelu(x):
    return torch.nn.functional.gelu(x, approximate="tanh")
def _silu(x):
    return torch.nn.functional.silu(x)
def _sigmoid(x):
    return torch.sigmoid(x)
def _layernorm(x, axis=-1, eps=1e-5):
    m = x.mean(dim=axis, keepdim=True)
    v = x.var(dim=axis, keepdim=True, unbiased=False)
    return (x - m) / torch.sqrt(v + eps)
def _scatter_add(tgt, idx, src, axis=0):
    return tgt.clone().index_add_(axis, idx, src)
def _segment_sum(src, seg, n):
    out = torch.zeros((n,) + src.shape[1:], dtype=src.dtype)
    return out.index_add_(0, seg, src)
def _pad(x, pw):
    flat = tuple(v for pair in reversed(pw) for v in pair)
    return torch.nn.functional.pad(x, flat)

kernel_name = 'recurrent_scan__ssm_conv_s4__dense_activation_silu__prompt'

def setup_inputs():

    _w = (lambda a: (lambda t: t.to(torch.bfloat16) if t.is_floating_point() else t)(torch.as_tensor(a)))
    def _A_setup():
        B, L, D, N = 1, 2048, 576, 128
        A_re = -(lambda _x: torch.exp(torch.as_tensor(_x)))((lambda *s: torch.randn(*s, dtype=torch.bfloat16) * 3.2)(D, N))
        A_im = torch.pi * (lambda *s: torch.randn(*s, dtype=torch.bfloat16) * 0.2)(D, N)
        B_re = (lambda *s: torch.randn(*s, dtype=torch.bfloat16) * 0.2)(D, N)
        B_im = (lambda *s: torch.randn(*s, dtype=torch.bfloat16) * 0.2)(D, N)
        C_re = (lambda *s: torch.randn(*s, dtype=torch.bfloat16) * 0.2)(D, N)
        C_im = (lambda *s: torch.randn(*s, dtype=torch.bfloat16) * 0.2)(D, N)
        log_dt = (lambda *s: torch.randn(*s, dtype=torch.bfloat16) * 0.2)(D) * 0.5 - 4.0
        Dskip = (lambda *s: torch.randn(*s, dtype=torch.bfloat16) * 0.2)(D)
        return {
            "u": _w((lambda *s: torch.randn(*s, dtype=torch.bfloat16) * 0.05)(B, L, D)),
            "A_re": _w(A_re),
            "A_im": _w(A_im),
            "B_re": _w(B_re),
            "B_im": _w(B_im),
            "C_re": _w(C_re),
            "C_im": _w(C_im),
            "log_dt": _w(log_dt),
            "Dskip": _w(Dskip),
        }
    _A_in = _A_setup()

    def _B_setup():
        B, S, D, F = 1, 2048, 576, 4608
        return {
            "x": _w((lambda *s: torch.randn(*s, dtype=torch.bfloat16) * 0.05)(B, S, D)),
            "w1": _w((lambda *s: torch.randn(*s, dtype=torch.bfloat16) * 0.8)(D, F) * (D ** -0.5)),
            "w2": _w((lambda *s: torch.randn(*s, dtype=torch.bfloat16) * 0.1)(F, D) * (F ** -0.5)),
        }
    _B_in = _B_setup()

    return {
        "A_u": _A_in["u"],
        "A_A_re": _A_in["A_re"],
        "A_A_im": _A_in["A_im"],
        "A_B_re": _A_in["B_re"],
        "A_B_im": _A_in["B_im"],
        "A_C_re": _A_in["C_re"],
        "A_C_im": _A_in["C_im"],
        "A_log_dt": _A_in["log_dt"],
        "A_Dskip": _A_in["Dskip"],
        "B_x": _B_in["x"],
        "B_w1": _B_in["w1"],
        "B_w2": _B_in["w2"],
    }

def reference(A_u, A_A_re, A_A_im, A_B_re, A_B_im, A_C_re, A_C_im, A_log_dt, A_Dskip, B_x, B_w1, B_w2):
    def _A_ref(u, A_re, A_im, B_re, B_im, C_re, C_im, log_dt, Dskip):
        Bsz, L, D = u.shape
        dt = torch.exp(log_dt)[:, None]
        A = A_re + 1j * A_im
        Bc = B_re + 1j * B_im
        Cc = C_re + 1j * C_im
        logdA = dt * A
        dB = dt * Bc
        l = (lambda x, dt: x.to(dt))(torch.arange(L), A_re.dtype)
        P = torch.exp(logdA[:, :, None] * l[None, None, :])
        K = torch.einsum("dn,dnl,dn->dl", Cc, P, dB).real
        L2 = 2 * L
        Kp = _pad(K, ((0, 0), (0, L)))
        up = (lambda x, *d: x.permute(*d))(u, 0, 2, 1)
        up = _pad(up, ((0, 0), (0, 0), (0, L)))
        Kf = (lambda x, axes=(-2,-1): torch.fft.rfft2(x.float(), dim=axes))(Kp[:, None, :], axes=(-2, -1))
        Uf = (lambda x, axes=(-2,-1): torch.fft.rfft2(x.float(), dim=axes))(up[:, :, None, :], axes=(-2, -1))
        Yf = Uf * Kf[None, :, :, :]
        y = (lambda x, s, axes=(-2,-1): torch.fft.irfft2(x, s=s, dim=axes).to(torch.bfloat16))(Yf, (1, L2), axes=(-2, -1))[:, :, 0, :L]
        y = (lambda x, *d: x.permute(*d))(y, 0, 2, 1) + u * Dskip[None, None, :]
        return y

    def _B_ref(x, w1, w2):
        h = torch.einsum("bsd,df->bsf", x, w1)
        h = _silu(h)
        out = torch.einsum("bsf,fd->bsd", h, w2)
        return out

    x = A_u
    xn = _layernorm(x, axis=-1)
    s = _A_ref(xn, A_A_re, A_A_im, A_B_re, A_B_im, A_C_re, A_C_im, A_log_dt, A_Dskip)
    g = _silu(_B_ref(xn, B_w1, B_w2))
    return x + s * g
```

```python
KN = "recurrent_scan__ssm_conv_s4__dense_activation_silu__prompt_kernel"

class Asm:
    def __init__(self):
        self.L = []
        self.lab = 0
    def __call__(self, s):
        for line in s.split("\n"):
            line = line.strip()
            if line:
                self.L.append(line)
    def label(self, name):
        self.L.append(name + ":")
    def newlabel(self, p="L"):
        self.lab += 1
        return f"{p}_{self.lab}"
    def text(self):
        return "\n".join(self.L) + "\n"

def v(i, n=1):
    return f"v{i}" if n == 1 else f"v[{i}:{i+n-1}]"
def a(i, n=1):
    return f"a{i}" if n == 1 else f"a[{i}:{i+n-1}]"
def s(i, n=1):
    return f"s{i}" if n == 1 else f"s[{i}:{i+n-1}]"

def kernel_head(name):
    return f".globl {name}\n.p2align 8\n.type {name},@function\n{name}:\n"

def kernel_desc(name, vgpr, sgpr=96, accum=None):
    if accum is None:
        accum = (vgpr + 3) // 4 * 4
    return (f".p2align 6\n.amdhsa_kernel {name}\n  .amdhsa_next_free_vgpr {vgpr}\n  .amdhsa_next_free_sgpr {sgpr}\n"
            f"  .amdhsa_accum_offset {accum}\n  .amdhsa_group_segment_fixed_size 0\n  .amdhsa_kernarg_size 120\n"
            f"  .amdhsa_user_sgpr_count 2\n  .amdhsa_user_sgpr_kernarg_segment_ptr 1\n  .amdhsa_system_sgpr_workgroup_id_x 1\n"
            f"  .amdhsa_float_denorm_mode_32 3\n.end_amdhsa_kernel\n")

def single_file(body, grid, block, lds, vgpr, sgpr=96, accum=None, name=KN, header=""):
    return (f"{header}; @launch grid=({grid},1,1) block=({block},1,1) lds={lds}\n"
            '.amdgcn_target "amdgcn-amd-amdhsa--gfx950"\n.text\n' + kernel_head(name) + body + "s_endpgm\n"
            '.section .rodata,"a"\n' + kernel_desc(name, vgpr, sgpr, accum))
```

```python
import re
REG = re.compile(r"\b([vas])(\d+)\b|\b([vas])\[(\d+):(\d+)\]|\b(vcc|exec|m0|scc)\b")
TRANS = ("v_exp_f32", "v_log_f32", "v_rcp_f32", "v_rsq_f32", "v_sqrt_f32", "v_sin_f32", "v_cos_f32", "v_rcp_iflag_f32")
def regs(tok):
    out = set()
    for m in REG.finditer(tok):
        if m.group(1): out.add((m.group(1), int(m.group(2))))
        elif m.group(3): out |= {(m.group(3), i) for i in range(int(m.group(4)), int(m.group(5)) + 1)}
        else: out.add((m.group(6), 0))
    return out
def split_ops(s):
    ops, cur, d = [], "", 0
    for ch in s:
        if ch == "[": d += 1
        if ch == "]": d -= 1
        if ch == "," and d == 0: ops.append(cur.strip()); cur = ""
        else: cur += ch
    if cur.strip(): ops.append(cur.strip())
    return ops
class I:
    def __init__(self, line):
        self.line = line
        p = line.split(None, 1)
        self.mn = p[0]
        rest = p[1] if len(p) > 1 else ""
        self.ops = split_ops(rest)
        mn = self.mn
        self.mfma = mn.startswith("v_mfma")
        self.valu = mn.startswith("v_") and not self.mfma
        self.trans = mn.replace("_e32", "").replace("_e64", "") in TRANS
        self.salu = mn.startswith("s_")
        self.ds = mn.startswith("ds_")
        self.vmem = mn.startswith(("buffer_", "global_", "flat_"))
        self.dpp = any(k in line for k in ("row_", "quad_perm", "wave_", "row_bcast", "row_mirror", "row_half_mirror"))
        self.lds_dma = self.vmem and re.search(r"\blds\b", line) is not None
        self.w, self.r = set(), set()
        o = self.ops
        R = lambda i: regs(o[i].split(" ")[0] if False else o[i]) if i < len(o) else set()
        if self.mfma:
            self.w = R(0); self.a = R(1) | R(2); self.c = R(3); self.r = self.a | self.c
            self.passes = 8 if "32x32" in mn else 4
            if "f32_16x16x4_f32" in mn: self.passes = 8
        elif self.valu:
            if mn.startswith(("v_cmp",)):
                self.w = R(0); self.r = set().union(*[R(i) for i in range(1, len(o))])
                if mn.startswith("v_cmpx"): self.w.add(("exec", 0))
            elif mn.startswith(("v_add_co", "v_sub_co", "v_addc_co", "v_subb_co", "v_mad_u64", "v_div_scale")):
                self.w = R(0) | R(1); self.r = set().union(*[R(i) for i in range(2, len(o))])
            elif mn.startswith(("v_permlane16_swap", "v_permlane32_swap", "v_swap")):
                self.w = R(0) | R(1); self.r = R(0) | R(1)
            else:
                self.w = R(0); self.r = set().union(*[R(i) for i in range(1, len(o))]) if len(o) > 1 else set()
                if mn.startswith(("v_fmac", "v_dot2c", "v_pk_fmac", "v_writelane", "v_mac")) or self.dpp or "d16" in mn or "dst_unused:UNUSED_PRESERVE" in line: self.r |= R(0)
                if mn.startswith("v_cndmask") and len(o) == 3: self.r.add(("vcc", 0))
        elif self.ds:
            if mn.startswith(("ds_read", "ds_bpermute", "ds_permute", "ds_swizzle")) or "_rtn" in mn:
                self.w = R(0); self.r = set().union(*[R(i) for i in range(1, len(o))]) if len(o) > 1 else set()
                if "d16" in mn: self.r |= R(0)
            else:
                self.r = set().union(*[R(i) for i in range(len(o))])
        elif self.vmem:
            if mn.startswith(("buffer_wbl2", "buffer_inv")): pass
            elif self.lds_dma: self.r = set().union(*[R(i) for i in range(len(o))]) | {("m0", 0)}
            elif "_load" in mn:
                self.w = R(0); self.r = set().union(*[R(i) for i in range(1, len(o))])
                if "d16" in mn: self.r |= R(0)
            else:
                self.r = set().union(*[R(i) for i in range(len(o))])
                if "atomic" in mn and "sc0" in line: self.w = R(0)
                self.data = R(0) if mn.startswith("buffer_") else R(1)
                self.wide = mn.endswith(("x3", "x4"))
        elif self.salu:
            if mn.startswith(("s_cmp", "s_cbranch", "s_branch", "s_waitcnt", "s_nop", "s_barrier", "s_sleep", "s_setprio", "s_endpgm", "s_setpc")):
                self.r = set().union(*[R(i) for i in range(len(o))]) if o else set()
            else:
                self.w = R(0); self.r = set().union(*[R(i) for i in range(1, len(o))]) if len(o) > 1 else set()
                if "saveexec" in mn: self.w.add(("exec", 0))
    def states(self):
        if self.mn == "s_nop": return int(self.ops[0], 0) + 1
        return 1
def isv(x): return x[0] in "va"
def need(p, c):
    n = 0
    vw = {x for x in p.w if isv(x)}
    sw = {x for x in p.w if not isv(x)}
    if p.valu:
        if c.mfma and vw & c.r: n = max(n, 2)
        if p.trans and (c.valu or c.ds or c.vmem or c.mfma) and vw & c.r: n = max(n, 1)
        if c.valu and c.mn.startswith(("v_readlane", "v_readfirstlane")) and vw & c.r: n = max(n, 1)
        if c.valu and c.dpp and vw & c.r: n = max(n, 2)
        if c.valu and c.mn.startswith("v_permlane") and vw & c.r: n = max(n, 2)
        if c.valu and sw & c.r: n = max(n, 4 if c.mn.startswith(("v_readlane", "v_writelane", "v_div_fmas")) else 2)
        if c.vmem and sw & c.r: n = max(n, 5)
        if c.salu and sw & c.r: n = max(n, 1)
        if ("exec", 0) in sw:
            if c.mfma or (c.valu and (c.dpp or c.mn.startswith(("v_readlane", "v_readfirstlane", "v_writelane", "v_permlane")))): n = max(n, 5)
        if "op_sel" in p.line and not p.mn.startswith("v_pk_") and c.valu and vw & (c.r | c.w): n = max(n, 1)
        if "sdwa" in p.mn and c.valu and vw & (c.r | c.w): n = max(n, 1)
        if p.mn.startswith("v_dot") and (c.valu or c.ds or c.vmem or c.mfma) and vw & (c.r | c.w):
            same = c.mn == p.mn and len(c.ops) >= 4 and regs(c.ops[3]) == vw and not (vw & (regs(c.ops[1]) | regs(c.ops[2])))
            if not same: n = max(n, 3)
    if p.mfma:
        big = {4: 8, 8: 12}[p.passes]
        if c.mfma:
            if vw & c.a: n = max(n, big)
            if vw & c.c and not (vw == c.c and p.passes == c.passes): n = max(n, big - 2)
            if vw & c.w and not (vw & c.c): n = max(n, big)
        elif (c.valu or c.ds or c.vmem) and vw & (c.r | c.w): n = max(n, big)
        if c.valu and p.c & c.w: n = max(n, {4: 3, 8: 7}[p.passes])
    if p.salu and ("m0", 0) in sw and c.vmem and c.lds_dma: n = max(n, 1)
    if p.vmem and getattr(p, "wide", False) and (c.valu or c.mfma) and p.data & c.w: n = max(n, 2)
    if p.vmem and getattr(p, "wide", False) and (c.ds or c.vmem) and p.data & c.w: n = max(n, 1)
    return n
def fix(lines, window=14):
    out = []
    hist = []
    skip_to = set()
    saved = {}
    dead = False
    for ln in lines:
        s = ln.split(";")[0].strip()
        if not s or s.startswith("."):
            out.append(ln); continue
        if s.endswith(":"):
            lab = s[:-1]
            if lab in skip_to:
                skip_to.discard(lab)
                if not skip_to:
                    for h in hist: h[1] = h[2]; h[3] = False
            if lab in saved:
                if dead: hist = []
                hist = hist + [list(h) for h in saved[lab]]
            dead = False
            out.append(ln); continue
        c = I(s)
        req = 0
        for h in hist:
            k = need(h[0], c) - h[1]
            if k > req: req = k
        add = c.states()
        if req > 0:
            r = req
            while r > 0:
                q = min(r, 16)
                out.append(f"s_nop {q-1}")
                r -= q
            add += req
        out.append(ln)
        for h in hist:
            h[1] += add
            if not skip_to or h[3]: h[2] += add
        hist.append([c, 0, 0, bool(skip_to)])
        hist = [h for h in hist if h[2] < window]
        if c.mn.startswith("s_cbranch") or c.mn == "s_branch":
            t = c.ops[0]
            if t.startswith("LB"):
                saved.setdefault(t, [])
                saved[t] += [[h[0], h[2], h[2], False] for h in hist]
                if c.mn == "s_branch": dead = True
            elif not t.startswith("LL"):
                skip_to.add(t)
    return out
```

```python
import math, struct
from asmlib import *

LOG2E = 1.4426950408889634
def f2u(x): return struct.unpack("<I", struct.pack("<f", x))[0]
def hx(x): return "0x%08x" % f2u(x)

WS_XN = 0
WS_UT = 0x280000
WS_KT = 0x500000
WS_ST = 0x680000
WS_HX = 0x900000
WS_PX = 0x1C00000
WS_FH = 0x3000000
WS_FP = 0x3040000
WS_FS = 0x3080000
WS_FU = 0x3088000
WS_END = 0x3090000

T_A = list(range(8)) + [256, 258, 260, 262, 512, 516, 768, 772, 1024, 1280, 1536, 1792, 2048]

def bf16_round_int(j):
    if j < 256: return j
    sh = j.bit_length() - 8
    q, r = j >> sh, j & ((1 << sh) - 1)
    half = 1 << (sh - 1)
    if r > half or (r == half and (q & 1)): q += 1
    return q << sh
def t_index(j):
    t = bf16_round_int(j)
    for a, ta in enumerate(T_A):
        d = t - ta
        if d >= 0 and d % 8 == 0 and d // 8 < 32: return a * 32 + d // 8
    raise ValueError(j)

def cmul(A, d, a, b):
    A(f"v_pk_mul_f32 v[{d}:{d+1}], v[{a}:{a+1}], v[{b}:{b+1}] op_sel_hi:[1,0]")
    A(f"v_pk_fma_f32 v[{d}:{d+1}], v[{a}:{a+1}], v[{b}:{b+1}], v[{d}:{d+1}] op_sel:[1,1,0] op_sel_hi:[0,1,1] neg_lo:[1,0,0]")

def kgen(A, vb, s_ch, s_tmp, lds_base_v, srd, out):
    pass

INV2PI = 0.15915494309189535
def kgen(A, vb, v_lane, s_ch, s_par, s_t, scratch, out):
    RAW = vb
    VO = vb + 6
    DT = vb + 7
    T0 = vb + 8
    M = lambda m, k: vb + 16 + m * 20 + k * 2
    WA = vb + 56
    RA = vb + 57
    PK = vb + 58
    YF = vb + 64
    XFr = vb + 128
    D = vb + 160
    A(f"s_lshl_b32 s{s_t}, {s_ch}, 8")
    A(f"v_lshl_add_u32 v{VO}, v{v_lane}, 2, s{s_t}")
    for i in range(6): A(f"global_load_dword v{RAW+i}, v{VO}, s[{s_par+2*i}:{s_par+2*i+1}]")
    A(f"s_lshl_b32 s{s_t}, {s_ch}, 1\nv_mov_b32 v{T0}, s{s_t}")
    A(f"global_load_ushort v{DT}, v{T0}, s[{s_par+12}:{s_par+13}]")
    A(f"v_lshlrev_b32 v{WA}, 3, v{v_lane}\nv_add_u32 v{WA}, {scratch}, v{WA}")
    A(f"v_and_b32 v{T0}, 15, v{v_lane}\nv_mul_u32_u24 v{T0}, 544, v{T0}\nv_lshrrev_b32 v{T0+1}, 4, v{v_lane}\nv_lshl_add_u32 v{RA}, v{T0+1}, 4, v{T0}\nv_add_u32 v{RA}, {scratch}, v{RA}")
    A("s_waitcnt vmcnt(0)")
    Lhi = struct.unpack("<f", struct.pack("<f", LOG2E))[0]; Llo = LOG2E - Lhi
    A(f"v_lshlrev_b32 v{DT}, 16, v{DT}")
    A(f"s_mov_b32 s{s_t}, {hx(Lhi)}\ns_mov_b32 s{s_t+1}, {hx(Llo)}\ns_mov_b32 s{s_t+2}, {hx(math.log(2))}\ns_mov_b32 s{s_t+3}, {hx(INV2PI)}")
    A(f"v_mul_f32 v{T0}, s{s_t}, v{DT}")
    A(f"v_fma_f32 v{T0+1}, v{DT}, s{s_t}, -v{T0}")
    A(f"v_fma_f32 v{T0+1}, v{DT}, s{s_t+1}, v{T0+1}")
    A(f"v_exp_f32 v{T0}, v{T0}")
    A(f"v_mul_f32 v{T0+1}, s{s_t+2}, v{T0+1}")
    A(f"v_fma_f32 v{T0}, v{T0}, v{T0+1}, v{T0}")
    A(f"v_cvt_pk_bf16_f32 v{DT}, v{T0}, v{T0}\nv_lshlrev_b32 v{DT}, 16, v{DT}")
    for m in range(2):
        def un(d, r):
            A(f"v_lshlrev_b32 v{d}, 16, v{r}" if m == 0 else f"v_and_b32 v{d}, 0xffff0000, v{r}")
        un(T0, RAW); un(T0 + 1, RAW + 1)
        A(f"v_mul_f32 v{T0}, v{DT}, v{T0}\nv_mul_f32 v{T0+1}, v{DT}, v{T0+1}")
        A(f"v_mul_f32 v{M(m,0)}, s{s_t}, v{T0}\nv_mul_f32 v{M(m,0)+1}, s{s_t+3}, v{T0+1}")
        un(T0, RAW + 2); un(T0 + 1, RAW + 3); un(T0 + 2, RAW + 4); un(T0 + 3, RAW + 5)
        A(f"v_mul_f32 v{T0}, v{DT}, v{T0}\nv_mul_f32 v{T0+1}, v{DT}, v{T0+1}")
        cmul(A, M(m, 1), T0 + 2, T0)
    for k, t in ((2, 1.0), (3, 8.0), (4, 256.0)):
        for m in range(2):
            b = T0 + m * 4
            if t == 1.0:
                A(f"v_exp_f32 v{b}, v{M(m,0)}\nv_fract_f32 v{b+1}, v{M(m,0)+1}")
            else:
                A(f"v_mul_f32 v{b}, {hx(t)}, v{M(m,0)}\nv_mul_f32 v{b+1}, {hx(t)}, v{M(m,0)+1}")
                A(f"v_exp_f32 v{b}, v{b}\nv_fract_f32 v{b+1}, v{b+1}")
            A(f"v_cos_f32 v{b+2}, v{b+1}\nv_sin_f32 v{b+3}, v{b+1}")
        for m in range(2):
            b = T0 + m * 4
            A(f"v_pk_mul_f32 v[{M(m,k)}:{M(m,k)+1}], v[{b+2}:{b+3}], v[{b}:{b+1}] op_sel_hi:[1,0]")
    for m in range(2): cmul(A, M(m, 5), M(m, 2), M(m, 2))
    for m in range(2): cmul(A, M(m, 6), M(m, 5), M(m, 5))
    cnt = [0]
    def put(row, k, neg):
        p = PK + (cnt[0] % 2) * 2; cnt[0] += 1
        for m in range(2):
            A(f"v_cvt_pk_bf16_f32 v{p+m}, v{M(m,k)}, {'-' if neg else ''}v{M(m,k)+1}")
        A(f"ds_write_b64 v{WA}, v[{p}:{p+1}] offset:{(row % 16) * 544}")
    def rd(dst):
        for s_ in range(8): A(f"ds_read_b128 v[{dst+s_*4}:{dst+s_*4+3}], v{RA} offset:{s_*64}")
    def step(dk, ak, bk):
        for m in range(2): cmul(A, M(m, dk), M(m, ak), M(m, bk))
    for m in range(2): A(f"v_mov_b32 v{M(m,7)}, 1.0\nv_mov_b32 v{M(m,7)+1}, 0")
    put(0, 7, False); put(1, 3, False)
    cur = 3
    for b in range(2, 32):
        nxt = 7 if cur != 7 else 8
        step(nxt, cur, 3); put(b, nxt, False); cur = nxt
        if b == 15: rd(YF)
    rd(YF + 32)
    put(0, 1, True); cur = 1
    for a_ in range(1, 8):
        nxt = 7 if cur != 7 else 8
        step(nxt, cur, 2); put(a_, nxt, True); cur = nxt
    step(9, 1, 4); put(8, 9, True)
    step(7, 9, 5); put(9, 7, True)
    step(8, 7, 5); put(10, 8, True)
    step(7, 8, 5); put(11, 7, True)
    step(8, 9, 4); put(12, 8, True)
    step(7, 8, 6); put(13, 7, True)
    step(9, 8, 4); put(14, 9, True)
    step(7, 9, 6); put(15, 7, True)
    rd(XFr)
    cur = 9
    nxts = [8, 7, 8, 7, 8]
    for i in range(5):
        step(nxts[i], cur, 4); put(16 + i, nxts[i], True); cur = nxts[i]
    A("s_waitcnt lgkmcnt(5)")
    for ta in range(2):
        if ta == 1:
            rd(XFr); A("s_waitcnt lgkmcnt(0)")
        for s_ in range(8):
            for tb in range(2):
                d = D + (tb * 2 + ta) * 4
                c = f"v[{d}:{d+3}]" if s_ else "0"
                A(f"v_mfma_f32_16x16x32_bf16 v[{d}:{d+3}], v[{YF+tb*32+s_*4}:{YF+tb*32+s_*4+3}], v[{XFr+s_*4}:{XFr+s_*4+3}], {c}")
    for ta in range(2):
        for tb in range(2):
            d = D + (tb * 2 + ta) * 4
            p = T0 + (tb * 2 + ta) * 2
            A(f"v_cvt_pk_bf16_f32 v{p}, v{d}, v{d+1}\nv_cvt_pk_bf16_f32 v{p+1}, v{d+2}, v{d+3}")
            if ta == 1:
                if tb == 0: A(f"v_and_b32 v{PK}, 15, v{v_lane}\nv_cmp_gt_u32 vcc, 5, v{PK}")
                A(f"v_cndmask_b32 v{p}, 0, v{p}, vcc\nv_cndmask_b32 v{p+1}, 0, v{p+1}, vcc")
            out(tb, ta, p)

def wave_reduce_hi3(A, x, t):
    A(f"v_add_f32_dpp v{x}, v{x}, v{x} row_ror:8 row_mask:0xf bank_mask:0xf")
    A(f"v_mov_b32 v{t}, v{x}\nv_permlane16_swap_b32 v{t}, v{x}\nv_add_f32 v{x}, v{x}, v{t}")
    A(f"v_mov_b32 v{t}, v{x}\nv_permlane32_swap_b32 v{t}, v{x}\nv_add_f32 v{x}, v{x}, v{t}")

def ln8(A, vb, v_lane, s_blk, srd_x, srd_ws, s_t, scratch, aux="sc1", xn_store=True):
    X = vb
    S, Q, T, MM, R = vb + 36, vb + 37, vb + 38, vb + 40, vb + 42
    VA, VB = vb + 44, vb + 45
    U = vb + 46
    O = vb + 52
    A(f"s_lshl_b32 s{s_t}, {s_blk}, 3")
    A(f"v_and_b32 v{T}, 7, v{v_lane}\nv_add_u32 v{VA}, s{s_t}, v{T}\nv_mul_u32_u24 v{VA}, 1152, v{VA}")
    A(f"v_lshrrev_b32 v{T+1}, 3, v{v_lane}\nv_lshl_add_u32 v{VA}, v{T+1}, 4, v{VA}")
    for i in range(9): A(f"buffer_load_dwordx4 v[{X+4*i}:{X+4*i+3}], v{VA}, {srd_x}, 0 offen offset:{i*128}")
    A(f"s_lshr_b32 s{s_t}, {s_blk}, 1\ns_mul_i32 s{s_t}, s{s_t}, 18432\ns_and_b32 s{s_t+1}, {s_blk}, 1\ns_lshl_b32 s{s_t+1}, s{s_t+1}, 7\ns_add_u32 s{s_t}, s{s_t}, s{s_t+1}")
    A(f"v_lshlrev_b32 v{VA}, 8, v{T+1}\nv_lshl_add_u32 v{VA}, v{T}, 4, v{VA}\nv_add_u32 v{VA}, s{s_t}, v{VA}")
    A(f"v_mul_u32_u24 v{VB}, 1168, v{T}\nv_lshl_add_u32 v{VB}, v{T+1}, 4, v{VB}\nv_add_u32 v{VB}, {scratch}, v{VB}")
    A(f"s_mov_b32 s{s_t+1}, 0x3f803f80\nv_mov_b32 v{S}, 0\nv_mov_b32 v{Q}, 0")
    for i in range(9):
        A(f"s_waitcnt vmcnt({8-i})")
        for k in range(4):
            A(f"v_dot2_f32_bf16 v{S}, v{X+4*i+k}, s{s_t+1}, v{S}")
            A(f"v_dot2_f32_bf16 v{Q}, v{X+4*i+k}, v{X+4*i+k}, v{Q}")
    wave_reduce_hi3(A, S, T); wave_reduce_hi3(A, Q, T)
    A(f"s_mov_b32 s{s_t+1}, {hx(1.0/576)}")
    A(f"v_mul_f32 v{S}, s{s_t+1}, v{S}\nv_mul_f32 v{Q}, s{s_t+1}, v{Q}")
    A(f"v_fma_f32 v{Q}, -v{S}, v{S}, v{Q}\nv_max_f32 v{Q}, 0, v{Q}")
    A(f"v_cvt_pk_bf16_f32 v{T}, v{S}, v{Q}")
    A(f"v_lshlrev_b32 v{MM}, 16, v{T}\nv_and_b32 v{Q}, 0xffff0000, v{T}")
    A(f"v_add_f32 v{Q}, {hx(1e-5)}, v{Q}\nv_cvt_pk_bf16_f32 v{Q}, v{Q}, v{Q}\nv_lshlrev_b32 v{Q}, 16, v{Q}")
    A(f"v_sqrt_f32 v{Q}, v{Q}\nv_cvt_pk_bf16_f32 v{Q}, v{Q}, v{Q}\nv_lshlrev_b32 v{Q}, 16, v{Q}\nv_rcp_f32 v{R}, v{Q}")
    for i in range(9):
        for k in range(4):
            x = X + 4 * i + k; u = U + (k % 2) * 2
            if u % 2: raise ValueError
            A(f"v_lshlrev_b32 v{u}, 16, v{x}\nv_and_b32 v{u+1}, 0xffff0000, v{x}")
            A(f"v_pk_add_f32 v[{u}:{u+1}], v[{u}:{u+1}], v[{MM}:{MM+1}] op_sel_hi:[1,0] neg_lo:[0,1] neg_hi:[0,1]")
            A(f"v_cvt_pk_bf16_f32 v{x}, v{u}, v{u+1}")
            A(f"v_lshlrev_b32 v{u}, 16, v{x}\nv_and_b32 v{u+1}, 0xffff0000, v{x}")
            A(f"v_pk_mul_f32 v[{u}:{u+1}], v[{u}:{u+1}], v[{R}:{R+1}] op_sel_hi:[1,0]")
            A(f"v_cvt_pk_bf16_f32 v{x}, v{u}, v{u+1}")
        if xn_store:
            A(f"s_mov_b32 s{s_t+1}, {WS_XN + i*2048}")
            A(f"buffer_store_dwordx4 v[{X+4*i}:{X+4*i+3}], v{VA}, {srd_ws}, s{s_t+1} offen {aux}")
        A(f"ds_write_b128 v{VB}, v[{X+4*i}:{X+4*i+3}] offset:{i*128}")
    A(f"v_bfe_u32 v{T}, v{v_lane}, 2, 2\nv_mul_u32_u24 v{T}, 1168, v{T}\nv_lshrrev_b32 v{T+1}, 4, v{v_lane}\nv_lshl_add_u32 v{T}, v{T+1}, 5, v{T}")
    A(f"v_and_b32 v{T+1}, 3, v{v_lane}\nv_lshl_add_u32 v{T}, v{T+1}, 3, v{T}\nv_add_u32 v{VB}, {scratch}, v{T}")
    A(f"s_mul_i32 s{s_t}, {s_blk}, 9216\ns_add_u32 s{s_t}, s{s_t}, {WS_UT}\nv_lshlrev_b32 v{VA}, 4, v{v_lane}")
    for i in range(9):
        o = X + 4 * i
        A(f"ds_read_b64_tr_b16 v[{o}:{o+1}], v{VB} offset:{i*128}\nds_read_b64_tr_b16 v[{o+2}:{o+3}], v{VB} offset:{i*128+4*1168}")
    for i in range(9):
        o = X + 4 * i
        A(f"s_waitcnt lgkmcnt({min(15, 2*(8-i))})")
        if i % 4 == 0 and i: A(f"s_add_u32 s{s_t}, s{s_t}, 4096")
        A(f"buffer_store_dwordx4 v[{o}:{o+3}], v{VA}, {srd_ws}, s{s_t} offen offset:{(i%4)*1024} {aux}")

def chan_of(A, s_wg, s_idx, s_out, s_n, s_t):
    A(f"s_and_b32 s{s_t}, {s_wg}, 7\ns_mul_i32 s{s_t}, s{s_t}, 72\ns_lshr_b32 s{s_t+1}, {s_wg}, 3")
    A(f"s_min_u32 {s_out}, s{s_t+1}, 8\ns_lshl_b32 {s_n}, s{s_t+1}, 1\ns_add_u32 {s_out}, {s_out}, {s_n}\ns_add_u32 {s_out}, {s_out}, s{s_t}")
    A(f"s_cmp_lt_u32 s{s_t+1}, 8\ns_cselect_b32 {s_n}, 3, 2")
```

```python
import sys
from asmlib import *
from parts import *
import hazard

SLOT = 9216
NS = 13
CV = 9 * SLOT
KC = lambda ch: CV + ch * 16640
UB = lambda ch: CV + 3 * 16640 + ch * 4608
TB = lambda ch: CV + 3 * 16640 + 3 * 4608 + ch * 2048
SS = TB(3)
RED = 0
assert SS + 2 * 5120 <= 163840

class VM:
    def __init__(self): self.ops = []
    def issue(self, tag): self.ops.append(tag)
    def wait_for(self, pred):
        idx = [i for i, t in enumerate(self.ops) if pred(t)]
        if not idx: return None
        last = idx[-1]
        n = len(self.ops) - 1 - last
        self.ops = self.ops[last + 1:]
        assert n <= 63, n
        return n

def gen_k0():
    A = Asm()
    A("s_cmp_ge_u32 s2, 256\ns_cbranch_scc1 LB0_end")
    A("s_load_dwordx16 s[36:51], s[0:1], 8")
    A("s_load_dwordx2 s[20:21], s[0:1], 0")
    A("s_load_dwordx2 s[16:17], s[0:1], 112")
    A("s_load_dwordx4 s[4:7], s[0:1], 80")
    A("v_lshrrev_b32 v1, 6, v0\nv_readfirstlane_b32 s28, v1\nv_and_b32 v2, 63, v0")
    A(f"s_mov_b32 s18, {WS_END}\ns_mov_b32 s19, 0x20000\ns_mov_b32 s22, 2359296\ns_mov_b32 s23, 0x20000")
    chan_of(A, "s2", None, "s30", "s31", 32)
    A("s_mul_i32 s34, s28, 9344")
    A("s_waitcnt lgkmcnt(0)")
    A("s_cmp_eq_u32 s28, 3\ns_cbranch_scc1 LB0_ln")
    A("s_cmp_ge_u32 s28, s31\ns_cbranch_scc1 LB0_pf")
    A("s_add_u32 s30, s30, s28")
    def out(tb, ta, p):
        if tb == 0 and ta == 0:
            A(f"s_lshl_b32 s33, s30, 11\ns_add_u32 s33, s33, {WS_KT}")
            A("v_and_b32 v3, 15, v2\nv_lshlrev_b32 v3, 6, v3\nv_lshrrev_b32 v4, 4, v2\nv_lshl_add_u32 v3, v4, 3, v3")
        A(f"buffer_store_dwordx2 v[{p}:{p+1}], v3, s[16:19], s33 offen offset:{ta*1024+tb*32}")
    kgen(A, 8, 2, "s30", 36, 52, "s34", out)
    A("s_branch LB0_end")
    A.label("LB0_pf")
    A("s_and_b32 s33, s2, 7\ns_mul_i32 s33, s33, 24\ns_lshr_b32 s35, s2, 3\ns_sub_u32 s35, s35, 8\ns_add_u32 s33, s33, s35\ns_mul_i32 s33, s33, 27648")
    A("v_lshlrev_b32 v3, 4, v2\nv_add_u32 v3, s33, v3")
    for w in range(2):
        for i in range(27):
            A(f"global_load_dwordx4 v[{8+(w*27+i)*4}:{11+(w*27+i)*4}], v3, s[{4+2*w}:{5+2*w}]" + (f" offset:{(i%4)*1024}" if i % 4 else ""))
            if i % 4 == 3: A("v_add_u32 v3, 4096, v3")
        A("v_subrev_u32 v3, 24576, v3")
    A("s_waitcnt vmcnt(0)")
    A("s_branch LB0_end")
    A.label("LB0_ln")
    A(f"s_mul_i32 s33, s2, {18*128}\ns_add_u32 s33, s33, {WS_FH}\nv_lshlrev_b32 v3, 7, v2\nv_mov_b32 v4, 0")
    A("v_cmp_gt_u32 vcc, 18, v2\ns_and_saveexec_b64 s[56:57], vcc")
    A("buffer_store_dword v4, v3, s[16:19], s33 offen")
    A("s_mov_b64 exec, s[56:57]")
    A("s_waitcnt vmcnt(0)")
    ln8(A, 8, 2, "s2", "s[20:23]", "s[16:19]", 52, "s34", aux="")
    A.label("LB0_end")
    return A

ACC, WF, XF = 32, 104, 152
NW, XD = 12, 13
V_L16 = 3
V_TR = 8
V_D1 = 11
V_D2 = 14
V_D3 = 17
V_T = 20
S_W1, S_W2, S_WS, S_X, S_OUT = "s[8:11]", "s[12:15]", "s[16:19]", "s[20:23]", "s[24:27]"

def gen_k1(stamps=False, stop_after=None):
    A = Asm()
    A("s_cmp_ge_u32 s2, 256\ns_cbranch_scc1 LB1_end")
    A("s_load_dwordx4 s[4:7], s[0:1], 80")
    A("s_load_dwordx2 s[16:17], s[0:1], 112")
    A("s_load_dwordx2 s[20:21], s[0:1], 0")
    A("s_load_dwordx2 s[24:25], s[0:1], 96")
    A("s_load_dwordx2 s[84:85], s[0:1], 64")
    if stamps: A("s_load_dwordx2 s[86:87], s[0:1], 104")
    A("v_lshrrev_b32 v1, 6, v0\nv_readfirstlane_b32 s28, v1\nv_and_b32 v2, 63, v0")
    A("s_and_b32 s30, s2, 7\ns_lshr_b32 s32, s2, 3\ns_and_b32 s31, s32, 3\ns_lshr_b32 s32, s32, 2\ns_and_b32 s29, s28, 3")
    A(f"s_mov_b32 s11, 0x20000\ns_mov_b32 s15, 0x20000\ns_mov_b32 s18, {WS_END}\ns_mov_b32 s19, 0x20000")
    A("s_mov_b32 s22, 2359296\ns_mov_b32 s23, 0x20000\ns_mov_b32 s26, 2359296\ns_mov_b32 s27, 0x20000")
    A(f"v_lshlrev_b32 v{V_L16}, 4, v2")
    for n in range(1, 5): A(f"v_add_u32 v{V_L16+n}, {4096*n}, v{V_L16}")
    A("s_lshl_b32 s33, s32, 4\ns_lshl_b32 s34, s28, 1\ns_add_u32 s33, s33, s34\ns_mul_i32 s34, s33, 18432\ns_add_u32 s35, s34, 18432")
    t = V_T
    for jj in range(3):
        if jj < 2: A(f"s_lshl_b32 s33, s29, 6\ns_add_u32 s33, s33, {jj*256}")
        else: A("s_mov_b32 s33, 512")
        A(f"v_add_u32 v{t}, s33, v2\ns_mov_b32 s33, 0xe38e38f\nv_mul_hi_u32 v{t+1}, v{t}, s33")
        A(f"v_mul_u32_u24 v{t+2}, 18, v{t+1}\nv_sub_u32 v{t+2}, v{t}, v{t+2}\nv_lshlrev_b32 v{t+2}, 4, v{t+2}")
        A(f"v_mul_u32_u24 v{t+3}, 1152, v{t+1}\nv_add_u32 v{V_D2+jj}, v{t+3}, v{t+2}")
        A(f"v_and_b32 v{t+3}, 3, v{t+1}\nv_bfe_u32 v{t+4}, v{t+1}, 2, 2\nv_lshl_add_u32 v{t+3}, v{t+4}, 3, v{t+3}\nv_lshrrev_b32 v{t+4}, 4, v{t+1}\nv_lshl_add_u32 v{t+3}, v{t+4}, 2, v{t+3}")
        A(f"v_mul_u32_u24 v{t+3}, 9216, v{t+3}\nv_add_u32 v{V_D1+jj}, v{t+3}, v{t+2}")
    A("s_lshl_b32 s37, s29, 10")
    A("s_waitcnt lgkmcnt(0)")
    A("s_mul_i32 s33, s30, 1152\ns_mul_i32 s38, s31, 288\ns_add_u32 s33, s33, s38\ns_add_u32 s8, s4, s33\ns_addc_u32 s9, s5, 0")
    A(f"s_sub_u32 s10, {576*9216}, s33")
    A(f"s_mul_i32 s33, s30, {576*1152}\ns_add_u32 s33, s33, s38\ns_add_u32 s12, s6, s33\ns_addc_u32 s13, s7, 0")
    A(f"s_sub_u32 s14, {4608*1152}, s33")
    nst = [0]
    def stamp(grp):
        if not stamps: return
        k = nst[0]; nst[0] += 1
        A(f"s_memrealtime s[{88+2*(k%2)}:{89+2*(k%2)}]\ns_waitcnt lgkmcnt(0)\nv_writelane_b32 v1, s{88+2*(k%2)}, {k}")
    A("s_cmp_ge_u32 s28, 4\ns_cbranch_scc1 LB1_B")

    def late_setup():
        A(f"v_lshrrev_b32 v{t}, 2, v2\nv_mul_u32_u24 v{t}, 288, v{t}\nv_and_b32 v{t+1}, 3, v2\nv_lshl_add_u32 v{V_TR}, v{t+1}, 3, v{t}")
        A(f"v_add_u32 v{V_TR+1}, {6*SLOT}, v{V_TR}\nv_add_u32 v{V_TR+2}, {12*SLOT}, v{V_TR}")
        A("s_lshl_b32 s36, s2, 3\ns_add_u32 s36, s36, s28")
        for p in range(4):
            A(f"s_add_u32 s{40+p}, s31, {p}\ns_and_b32 s{40+p}, s{40+p}, 3")
            A(f"s_lshl_b32 s33, s32, 2\ns_add_u32 s33, s33, s{40+p}\ns_lshl_b32 s33, s33, 3\ns_add_u32 s33, s33, s30\ns_lshl_b32 s33, s33, 3\ns_add_u32 s33, s33, s28")
            A(f"s_mul_i32 s{44+p}, s33, 9216\ns_add_u32 s{44+p}, s{44+p}, {WS_HX}")
            A(f"s_mul_i32 s{48+p}, s{40+p}, {144*1152}")
        chan_of(A, "s2", None, "s52", "s53", 54)
    def tile8_offsets(dst, pa, pb):
        A(f"s_sub_u32 s33, s{48+pb}, {16*1152}")
        for jj in range(3):
            A(f"v_mov_b32 v{t}, s{48+pa}\nv_mov_b32 v{t+1}, s33")
            A(f"v_cmp_gt_u32 vcc, {16*1152}, v{V_D2+jj}\nv_cndmask_b32 v{t}, v{t+1}, v{t}, vcc\nv_add_u32 v{dst+jj}, v{t}, v{V_D2+jj}")
    def g2_map(k):
        if k < 4: return ("pair", 0, k)
        if k < 8: return ("pair", 1, k - 4)
        if k == 8: return ("t8", 0, 1)
        if k < 13: return ("pair", 2, k - 9)
        if k < 17: return ("pair", 3, k - 13)
        return ("t8", 2, 3)
    def dma_ops(slot):
        o = []
        if slot < 18:
            srd, vb = S_W1, V_D1
            so = [f"s_mov_b32 s39, {slot*32*9216}"]
        else:
            srd = S_W2
            m = g2_map(slot - 18)
            if m[0] == "pair":
                vb = V_D2; so = [f"s_add_u32 s39, s{48+m[1]}, {m[2]*32*1152}"]
            else:
                vb = V_D3 if m[1] == 0 else V_D1; so = [f"s_mov_b32 s39, {128*1152}"]
        base = (slot % NS) * SLOT
        o.append(so + [f"s_add_u32 m0, s37, {base}"])
        o.append([f"buffer_load_dwordx4 v{vb}, {srd}, s39 offen lds", ("vm", ("dma", slot))])
        o.append([f"s_add_u32 m0, s37, {base + 4096}"])
        o.append([f"buffer_load_dwordx4 v{vb+1}, {srd}, s39 offen lds", ("vm", ("dma", slot))])
        lab = A.newlabel("Ld")
        o.append([f"s_mov_b32 m0, {base + 8192}", f"s_cmp_lg_u32 s29, {slot % 4}", f"s_cbranch_scc1 {lab}",
                  f"buffer_load_dwordx4 v{vb+2}, {srd}, s39 offen lds", f"{lab}:", ("vmx", ("dma", slot))])
        return o
    def emit(vm, item):
        for x in item:
            if isinstance(x, tuple):
                if x[0] == "vm": vm.issue(x[1])
                elif x[0] == "vmx":
                    vm.ops.append(("opt",) + x[1])
                elif x[0] == "wait":
                    n = vm_wait(vm, x[1])
                    if n is not None: A(f"s_waitcnt vmcnt({n})")
                elif x[0] == "call": x[1](vm)
            elif x.endswith(":"): A.label(x[:-1])
            else: A(x)
    def vm_wait(vm, pred):
        idx = [i for i, tg in enumerate(vm.ops) if pred(tg[1:] if tg[0] == "opt" else tg)]
        if not idx: return None
        last = idx[-1]
        n = sum(1 for tg in vm.ops[last + 1:] if tg[0] != "opt")
        vm.ops = vm.ops[last + 1:]
        assert n <= 63
        return n
    def tr(slot, tt):
        sl = slot % NS
        fi = (slot * 9 + tt) % NW
        return [f"ds_read_b64_tr_b16 v[{WF+fi*4+hh*2}:{WF+fi*4+hh*2+1}], v{V_TR + sl//6} offset:{(sl % 6) * SLOT + hh*16*288 + tt*32}" for hh in range(2)]
    def xl(step):
        o = []
        if step < 18:
            for mt in range(2):
                r = XF + (step % XD) * 8 + mt * 4
                o.append([f"buffer_load_dwordx4 v[{r}:{r+3}], v{V_L16 + step//4}, {S_WS}, s{34+mt} offen offset:{(step%4)*1024}", ("vm", ("x", step))])
        else:
            k = step - 18; m = g2_map(k)
            for mt in range(2):
                r = XF + (k % XD) * 8 + mt * 4
                if m[0] == "pair":
                    if m[1] == 0: continue
                    off = (m[2] * 2 + mt) * 1024
                    o.append([f"buffer_load_dwordx4 v[{r}:{r+3}], v{V_L16 + off//4096}, {S_WS}, s{44+m[1]} offen offset:{off%4096} sc1", ("vm", ("x", step))])
                else:
                    for hh, p in enumerate(m[1:]):
                        if p == 0: continue
                        o.append([f"buffer_load_dwordx2 v[{r+2*hh}:{r+2*hh+1}], v{V_L16+2}, {S_WS}, s{44+p} offen offset:{mt*8} sc1", ("vm", ("x", step))])
        return o
    def gemm_step(vm, step, extra, last):
        n = vm_wait(vm, lambda tg: tg == ("x", step))
        if n is not None: A(f"s_waitcnt vmcnt({n})")
        ex = list(extra)
        first = step % 18 == 0
        xs = step % XD if step < 18 else (step - 18) % XD
        for tt in range(9):
            fi = (step * 9 + tt) % NW
            pend = 4 if not (last and tt >= 7) else (2 if tt == 7 else 0)
            A(f"s_waitcnt lgkmcnt({pend})")
            for b_ in range(2):
                mt = b_ if tt % 2 == 0 else 1 - b_
                d = ACC + (tt * 2 + mt) * 4
                x = XF + xs * 8 + mt * 4
                c = "0" if first else f"v[{d}:{d+3}]"
                A(f"v_mfma_f32_16x16x32_bf16 v[{d}:{d+3}], v[{WF+fi*4}:{WF+fi*4+3}], v[{x}:{x+3}], {c}")
                tn = tt + 3
                if tn < 9: A(tr(step, tn)[b_])
                elif not last: A(tr(step + 1, tn - 9)[b_])
                if b_ == 1 and ex:
                    per = -(-len(ex) // (9 - tt))
                    for it in ex[:per]: emit(vm, it)
                    ex = ex[per:]
    def silu_slice(tt):
        o = []
        if tt == 0: o.append([f"s_mov_b32 s56, {hx(-LOG2E)}", f"s_mov_b32 s57, {hx(-LOG2E)}"])
        for mt in range(2):
            a_ = ACC + (tt * 2 + mt) * 4
            z = V_T + mt * 4
            for h in range(2): o.append([f"v_pk_mul_f32 v[{z+2*h}:{z+2*h+1}], v[{a_+2*h}:{a_+2*h+1}], s[56:57]"])
            for i in range(4): o.append([f"v_exp_f32 v{z+i}, v{z+i}"])
            for h in range(2): o.append([f"v_pk_add_f32 v[{z+2*h}:{z+2*h+1}], v[{z+2*h}:{z+2*h+1}], 1.0 op_sel_hi:[1,0]"])
            for i in range(4): o.append([f"v_rcp_f32 v{z+i}, v{z+i}"])
            for h in range(2): o.append([f"v_pk_mul_f32 v[{z+2*h}:{z+2*h+1}], v[{a_+2*h}:{a_+2*h+1}], v[{z+2*h}:{z+2*h+1}]"])
            dst = XF + (tt >> 1) * 8 + mt * 4 + (tt & 1) * 2 if tt < 8 else XF + 8 * 8 + mt * 4
            for h in range(2): o.append([f"v_cvt_pk_bf16_f32 v{dst+h}, v{z+2*h}, v{z+2*h+1}"])
            if tt == 8:
                for h in range(2): o.append([f"v_cvt_pk_bf16_f32 v{V_T+8+mt*2+h}, v{z+2*h}, v{z+2*h+1}"])
        if tt & 1:
            for mt in range(2):
                r = XF + (tt >> 1) * 8 + mt * 4; off = ((tt >> 1) * 2 + mt) * 1024
                o.append([f"buffer_store_dwordx4 v[{r}:{r+3}], v{V_L16+off//4096}, {S_WS}, s44 offen offset:{off%4096} sc1", ("vm", ("hst", 0))])
        if tt == 8:
            o.append([f"buffer_store_dwordx4 v[{V_T+8}:{V_T+11}], v{V_L16+2}, {S_WS}, s44 offen sc1", ("vm", ("hst", 0))])
        return o
    def flag_store(base, s_idx):
        lab = A.newlabel("Lf")
        return [[f"s_lshl_b32 s33, {s_idx}, 7", f"s_add_u32 s33, s33, {base}", f"v_mov_b32 v{V_T}, 0", f"v_mov_b32 v{V_T+1}, 1",
                 "s_mov_b64 exec, 1", f"buffer_store_dword v{V_T+1}, v{V_T}, {S_WS}, s33 offen sc1", "s_mov_b64 exec, -1", ("vm", ("fl", 0))]]
    def poll(vm, vaddr, nl):
        lab = A.newlabel("LLp"); done = A.newlabel("LBq")
        n = vm_wait(vm, lambda tg: True)
        A(f"s_mov_b64 exec, {hex((1 << nl) - 1)}\ns_mov_b32 s58, 0x40000")
        A.label(lab)
        A(f"buffer_load_dword v{V_T+11}, v{vaddr}, {S_WS}, 0 offen sc1\ns_waitcnt vmcnt(0)\nv_cmp_ne_u32 vcc, 1, v{V_T+11}")
        A(f"s_sub_u32 s58, s58, 1\ns_cbranch_vccz {done}\ns_cmp_gt_i32 s58, 0\ns_cbranch_scc1 {lab}")
        A.label(done)
        A("s_mov_b64 exec, -1")
    def h_poll(vm):
        A(f"v_add_u32 v{V_T}, s31, v2\nv_add_u32 v{V_T}, 1, v{V_T}\nv_and_b32 v{V_T}, 3, v{V_T}\ns_lshl_b32 s33, s32, 2\nv_add_u32 v{V_T}, s33, v{V_T}")
        A(f"v_lshlrev_b32 v{V_T}, 6, v{V_T}\ns_lshl_b32 s33, s30, 3\ns_add_u32 s33, s33, s28\nv_add_u32 v{V_T}, s33, v{V_T}\nv_lshlrev_b32 v{V_T}, 7, v{V_T}\nv_add_u32 v{V_T}, {WS_FH}, v{V_T}")
        poll(vm, V_T, 3)
    CA, CG, CF = ACC, ACC + 32, ACC + 96
    V_IDX = XF + 4 * 8
    V_FA, V_GA, V_RW, V_RR, V_UA, V_SA = V_IDX + 12, V_IDX + 13, V_IDX + 14, V_IDX + 15, V_IDX + 16, V_IDX + 17
    V_E = XF + 9 * 8
    def conv_fetch():
        o = []
        o.append(["s_getpc_b64 s[60:61]", "LLpc:", "s_add_u32 s60, s60, idx_table-LLpc", "s_addc_u32 s61, s61, 0",
                  f"v_and_b32 v{V_E}, 255, v0", f"v_lshlrev_b32 v{V_E}, 5, v{V_E}",
                  f"global_load_dwordx4 v[{V_E+4}:{V_E+7}], v{V_E}, s[60:61]", ("vm", ("idx", 0)),
                  f"global_load_dwordx2 v[{V_E+8}:{V_E+9}], v{V_E}, s[60:61] offset:16", ("vm", ("idx", 0))])
        o.append([f"s_lshl_b32 s33, s29, 6", f"v_add_u32 v{V_E+1}, s33, v2", f"v_mul_u32_u24 v{V_E+1}, 9216, v{V_E+1}"])
        for c in range(3):
            lab = A.newlabel("Lc")
            it = []
            if c == 2: it += ["s_cmp_lt_u32 s53, 3", f"s_cbranch_scc1 {lab}"]
            it += [f"s_add_u32 s33, s52, {c}", "s_lshl_b32 s39, s33, 4", f"s_add_u32 s39, s39, {WS_UT}", f"s_add_u32 m0, s37, {UB(c) + 480}", "s_nop 0",
                   f"buffer_load_dwordx4 v{V_E+1}, {S_WS}, s39 offen lds"]
            it += ["s_lshl_b32 s39, s33, 11", f"s_add_u32 s39, s39, {WS_KT}", "s_and_b32 s33, s37, 1024", "s_add_u32 s39, s39, s33", f"s_add_u32 m0, s33, {TB(c)}", "s_nop 0",
                   f"buffer_load_dwordx4 v{V_L16}, {S_WS}, s39 offen lds"]
            if c == 2: it += [f"{lab}:", ("vmx", ("cv", 0)), ("vmx", ("cv", 0))]
            else: it += [("vm", ("cv", 0)), ("vm", ("cv", 0))]
            o.append(it)
        it = [f"v_mov_b32 v{V_E+12+i}, 0" for i in range(4)]
        it += ["s_mul_i32 s33, s29, 4608", f"s_add_u32 s33, s33, {UB(0)}", f"v_add_u32 v{V_E+2}, s33, v{V_L16}",
               "s_cmp_eq_u32 s29, 3", "s_cselect_b32 exec_lo, 0, 0x3fffffff", "s_mov_b32 exec_hi, 0",
               f"ds_write_b128 v{V_E+2}, v[{V_E+12}:{V_E+15}]", "s_mov_b64 exec, -1"]
        o.append(it)
        o.append([f"v_lshrrev_b32 v{V_E+2}, 1, v2", f"v_mul_u32_u24 v{V_E+2}, 4160, v{V_E+2}", f"v_and_b32 v{V_E+3}, 1, v2", f"v_lshl_add_u32 v{V_E+2}, v{V_E+3}, 4, v{V_E+2}",
                  "s_mul_i32 s33, s29, 16640", f"s_add_u32 s33, s33, {KC(0) + 4096}", f"v_add_u32 v{V_E+2}, s33, v{V_E+2}",
                  "s_cmp_eq_u32 s29, 3", "s_cselect_b32 exec_lo, 0, 0xff", "s_mov_b32 exec_hi, 0", f"ds_write_b128 v{V_E+2}, v[{V_E+12}:{V_E+15}]", "s_mov_b64 exec, -1"])
        return o
    def conv_addr():
        o = []
        it = [("wait", lambda tg: tg[0] == "idx")]
        for i in range(11):
            src = V_E + 4 + i // 2
            it.append(f"v_and_b32 v{V_IDX+i}, 0xffff, v{src}" if i % 2 == 0 else f"v_lshrrev_b32 v{V_IDX+i}, 16, v{src}")
            it.append(f"v_add_u32 v{V_IDX+i}, {TB(0)}, v{V_IDX+i}")
        o.append(it)
        o.append([f"v_and_b32 v{V_IDX+11}, 255, v0", f"v_lshlrev_b32 v{V_IDX+11}, 4, v{V_IDX+11}", f"v_add_u32 v{V_IDX+11}, {KC(0)}, v{V_IDX+11}"])
        e = V_E
        o.append([f"v_and_b32 v{e}, 15, v2", f"v_sub_u32 v{e+1}, 3, v{e}", f"v_and_b32 v{e+1}, 3, v{e+1}", f"v_lshrrev_b32 v{e+2}, 4, v2",
                  f"v_lshlrev_b32 v{e+3}, 3, v{e+2}", f"v_sub_u32 v{e+3}, v{e+3}, v{e}", f"v_sub_u32 v{e+3}, v{e+3}, v{e+1}", f"v_add_u32 v{e+3}, 2031, v{e+3}",
                  f"v_lshlrev_b32 v{e+3}, 1, v{e+3}", f"v_mul_u32_u24 v{e+1}, 4160, v{e+1}", f"v_add_u32 v{e+3}, v{e+3}, v{e+1}",
                  "s_lshl_b32 s33, s29, 6", f"s_sub_u32 s33, {KC(0) - 15*256}, s33", f"v_add_u32 v{V_FA}, s33, v{e+3}"])
        o.append([f"v_lshlrev_b32 v{e+3}, 5, v{e}", f"v_lshl_add_u32 v{e+3}, v{e+2}, 4, v{e+3}",
                  "s_lshl_b32 s33, s29, 6", f"s_sub_u32 s33, {UB(0) + 2*(240-16) - 256}, s33", f"v_add_u32 v{V_GA}, s33, v{e+3}",
                  f"v_add_u32 v{V_RW}, s37, v{V_L16}",
                  "s_lshl_b32 s33, s29, 13", f"v_add_u32 v{V_RR}, s33, v{V_L16}",
                  f"v_lshlrev_b32 v{e+3}, 5, v{e}", f"v_lshl_add_u32 v{e+3}, v{e+2}, 3, v{e+3}", "s_lshl_b32 s33, s29, 10", f"s_add_u32 s33, s33, {UB(0) + 480}", f"v_add_u32 v{V_UA}, s33, v{e+3}",
                  f"v_and_b32 v{e+3}, 1, v{e+2}", f"v_lshl_add_u32 v{e+3}, v{e+3}, 4, v{e}", "s_lshl_b32 s33, s29, 5", f"v_add_u32 v{e+3}, s33, v{e+3}",
                  f"v_mul_u32_u24 v{e+3}, 18432, v{e+3}", f"v_lshrrev_b32 v{e+2}, 1, v{e+2}", f"v_lshl_add_u32 v{V_SA}, v{e+2}, 4, v{e+3}"])
        o.append(["s_lshl_b32 s39, s52, 1", "s_and_b32 s33, s39, -4", "s_min_u32 s33, s33, 1144", "s_sub_u32 s39, s39, s33", "s_add_u32 s60, s84, s33", "s_addc_u32 s61, s85, 0", "s_load_dwordx2 s[66:67], s[60:61], 0", "s_waitcnt lgkmcnt(0)",
                  "s_lshl_b32 s33, s39, 3", "s_lshr_b64 s[66:67], s[66:67], s33",
                  "s_lshl_b32 s62, s66, 16", "s_and_b32 s63, s66, 0xffff0000", "s_lshl_b32 s64, s67, 16"])
        return o
    def guard3(c, body):
        if c < 2: return body
        lab = A.newlabel("Lg")
        return ["s_cmp_lt_u32 s53, 3", f"s_cbranch_scc1 {lab}"] + body + [f"{lab}:"]
    def expand(c):
        e = V_E
        b = []
        for i in range(11):
            b.append(f"ds_read_u16 v{e + 16 + i}, v{V_IDX+i} offset:{c*2048}")
        b.append("s_waitcnt lgkmcnt(0)")
        for rho in range(4):
            for k in range(4):
                b.append(f"v_lshl_or_b32 v{e + rho*4 + k}, v{e + 16 + rho + 2*k + 1}, 16, v{e + 16 + rho + 2*k}")
            b.append(f"ds_write_b128 v{V_IDX+11}, v[{e+rho*4}:{e+rho*4+3}] offset:{c*16640 + rho*4160}")
        b.append("s_waitcnt lgkmcnt(0)")
        return [guard3(c, b)]
    def conv_mm(c, part):
        rng = [(0, 3), (3, 8), (8, 16)][part]
        b = []
        def fread(n):
            f = CF + (n % 4) * 4
            return [f"ds_read_b64 v[{f}:{f+1}], v{V_FA} offset:{c*16640 + (15-n)*256}", f"ds_read_b64 v[{f+2}:{f+3}], v{V_FA} offset:{c*16640 + (15-n)*256 + 8}"]
        if part == 0:
            b += fread(0)
            order = [2 * q + 1 for q in range(8)] + [2 * q for q in range(8)]
            for m in order[:8]: b.append(f"ds_read_b128 v[{CG+m*4}:{CG+m*4+3}], v{V_GA} offset:{c*4608 + m*256}")
            b += fread(1)
            for m in order[8:]: b.append(f"ds_read_b128 v[{CG+m*4}:{CG+m*4+3}], v{V_GA} offset:{c*4608 + m*256}")
            b += fread(2)
        for n in range(*rng):
            if n == 0: b.append("s_waitcnt lgkmcnt(12)")
            elif n == 1: b.append("s_waitcnt lgkmcnt(4)")
            else: b.append(f"s_waitcnt lgkmcnt({4 if n + 2 < 16 else (2 if n + 1 < 16 else 0)})")
            f = CF + (n % 4) * 4
            nf = fread(n + 3) if n + 3 < 16 else []
            for qi, q in enumerate(range(n >> 1, 8)):
                m = 2 * q + 1 - n
                d = CA + q * 4
                cc = "0" if n == 0 else f"v[{d}:{d+3}]"
                b.append(f"v_mfma_f32_16x16x32_bf16 v[{d}:{d+3}], v[{f}:{f+3}], v[{CG+m*4}:{CG+m*4+3}], {cc}")
                if qi == 0: b += nf
        if part == 2:
            for q in range(8): b.append(f"ds_write_b128 v{V_RW}, v[{CA+q*4}:{CA+q*4+3}] offset:{q*4096}")
            b.append("s_waitcnt lgkmcnt(0)")
        return [guard3(c, b)]
    def conv_epi(c):
        e = V_E
        b = []
        for qq in range(2):
            for w in range(4):
                r = e + (qq * 4 + w) * 4
                b.append(f"ds_read_b128 v[{r}:{r+3}], v{V_RR} offset:{qq*4096 + w*1024}")
        u = V_T
        for qq in range(2): b.append(f"ds_read_b64 v[{u+qq*2}:{u+qq*2+1}], v{V_UA} offset:{c*4608 + qq*512}")
        b.append("s_waitcnt lgkmcnt(0)")
        for qq in range(2):
            r = e + qq * 16
            for h in range(2):
                b.append(f"v_pk_add_f32 v[{r+2*h}:{r+2*h+1}], v[{r+2*h}:{r+2*h+1}], v[{r+4+2*h}:{r+5+2*h}]")
                b.append(f"v_pk_add_f32 v[{r+8+2*h}:{r+9+2*h}], v[{r+8+2*h}:{r+9+2*h}], v[{r+12+2*h}:{r+13+2*h}]")
                b.append(f"v_pk_add_f32 v[{r+2*h}:{r+2*h+1}], v[{r+2*h}:{r+2*h+1}], v[{r+8+2*h}:{r+9+2*h}]")
            for h in range(2):
                b.append(f"v_cvt_pk_bf16_f32 v{r+4}, v{r+2*h}, v{r+2*h+1}")
                b.append(f"v_lshlrev_b32 v{r+2*h}, 16, v{r+4}"); b.append(f"v_and_b32 v{r+2*h+1}, 0xffff0000, v{r+4}")
                b.append(f"v_lshlrev_b32 v{r+6}, 16, v{u+qq*2+h}"); b.append(f"v_and_b32 v{r+7}, 0xffff0000, v{u+qq*2+h}")
                b.append(f"v_mul_f32 v{r+6}, s{62+c}, v{r+6}"); b.append(f"v_mul_f32 v{r+7}, s{62+c}, v{r+7}")
                b.append(f"v_cvt_pk_bf16_f32 v{r+4}, v{r+6}, v{r+7}")
                b.append(f"v_lshlrev_b32 v{r+6}, 16, v{r+4}"); b.append(f"v_and_b32 v{r+7}, 0xffff0000, v{r+4}")
                b.append(f"v_pk_add_f32 v[{r+2*h}:{r+2*h+1}], v[{r+2*h}:{r+2*h+1}], v[{r+6}:{r+7}]")
                b.append(f"v_cvt_pk_bf16_f32 v{u+4+qq*2+h}, v{r+2*h}, v{r+2*h+1}")
        b.append(f"v_permlane16_swap_b32 v{u+4}, v{u+6}"); b.append(f"v_permlane16_swap_b32 v{u+5}, v{u+7}")
        b += [f"s_add_u32 s33, s52, {c}", "s_lshl_b32 s33, s33, 5", f"s_add_u32 s33, s33, {WS_ST}", f"buffer_store_dwordx4 v[{u+4}:{u+7}], v{V_SA}, {S_WS}, s33 offen sc1"]
        g = guard3(c, b)
        g.append(("vmx" if c == 2 else "vm", ("sst", 0)))
        return [g]
    def g2_epi(vm, grp):
        A(f"s_mul_i32 s59, s36, 10240\ns_add_u32 s59, s59, {WS_PX}")
        for mt in range(2):
            for u in range(4):
                r = XF + (mt * 4 + u) * 4
                for hh in range(2):
                    a_ = ACC + ((2 * u + hh) * 2 + mt) * 4
                    A(f"v_cvt_pk_bf16_f32 v{r+2*hh}, v{a_}, v{a_+1}\nv_cvt_pk_bf16_f32 v{r+2*hh+1}, v{a_+2}, v{a_+3}")
                off = mt * 5120 + u * 1024
                A(f"buffer_store_dwordx4 v[{r}:{r+3}], v{V_L16+off//4096}, {S_WS}, s59 offen offset:{off%4096} sc1"); vm.issue(("pst", 0))
            a_ = ACC + (16 + mt) * 4; off = mt * 5120 + 4096
            A(f"buffer_store_dwordx4 v[{a_}:{a_+3}], v{V_L16+off//4096}, {S_WS}, s59 offen offset:{off%4096} sc1"); vm.issue(("pst", 0))
    def final_pre(vm, grp, u_s, last):
        pass
    def final(vm, grp):
        X = 0 if grp == "A" else 1
        A(f"s_lshl_b32 s60, s32, 4\ns_add_u32 s60, s60, s30\ns_add_u32 s60, s60, {8*X}")
        A(f"s_lshl_b32 s33, s60, 4\nv_and_b32 v{V_T}, 15, v2\nv_add_u32 v{V_T}, s33, v{V_T}\nv_mul_u32_u24 v{V_T}, 1152, v{V_T}\nv_lshrrev_b32 v{V_T+1}, 4, v2\nv_lshl_add_u32 v{V_T}, v{V_T+1}, 3, v{V_T}")
        A(f"s_mul_i32 s33, s31, 288\nv_add_u32 v{V_T+2}, s33, v{V_T}")
        A("s_lshl_b32 s61, s29, 6")
        XR = ACC
        A(f"buffer_load_dwordx2 v[{XR}:{XR+1}], v{V_T+2}, {S_X}, s61 offen\nbuffer_load_dwordx2 v[{XR+2}:{XR+3}], v{V_T+2}, {S_X}, s61 offen offset:32")
        A(f"buffer_load_dwordx2 v[{XR+4}:{XR+5}], v{V_T+2}, {S_X}, 0 offen offset:256")
        for _ in range(3): vm.issue(("fx", 0))
        n = vm_wait(vm, lambda tg: tg[0] == "pst"); A(f"s_waitcnt vmcnt({n})")
        for it in flag_store(WS_FP, "s36"): emit(vm, it)
        A(f"v_lshrrev_b32 v{V_T+3}, 1, v2\nv_lshlrev_b32 v{V_T+3}, 3, v{V_T+3}\nv_and_b32 v{V_T+4}, 1, v2\nv_add_u32 v{V_T+3}, v{V_T+3}, v{V_T+4}\ns_lshl_b32 s33, s31, 1\nv_add_u32 v{V_T+3}, s33, v{V_T+3}")
        A(f"v_lshlrev_b32 v{V_T+3}, 7, v{V_T+3}\nv_add_u32 v{V_T+3}, {WS_FS}, v{V_T+3}")
        poll(vm, V_T + 3, 64)
        ssb = SS + X * 5120
        A(f"s_mul_i32 s39, s60, 18432\ns_mul_i32 s33, s31, {144*32}\ns_add_u32 s39, s39, s33\ns_add_u32 s39, s39, {WS_ST}")
        A(f"s_add_u32 s33, s39, s37\ns_add_u32 m0, s37, {ssb}\ns_nop 0\nbuffer_load_dwordx4 v{V_L16}, {S_WS}, s33 offen sc1 lds")
        lab = A.newlabel("Lu")
        A(f"s_cmp_lg_u32 s29, 0\ns_cbranch_scc1 {lab}\ns_mov_b32 m0, {ssb + 4096}\ns_mov_b32 exec_hi, 0\nbuffer_load_dwordx4 v{V_L16+1}, {S_WS}, s39 offen sc1 lds\ns_mov_b64 exec, -1")
        A.label(lab)
        A(f"s_lshl_b32 s33, s32, 2\ns_add_u32 s33, s33, s31\ns_lshl_b32 s33, s33, 6\ns_lshr_b32 s59, s30, 1\ns_add_u32 s33, s33, s59\ns_add_u32 s33, s33, {4*X}")
        A(f"v_lshl_add_u32 v{V_T+3}, v2, 3, s33\nv_lshlrev_b32 v{V_T+3}, 7, v{V_T+3}\nv_add_u32 v{V_T+3}, {WS_FP}, v{V_T+3}")
        A(f"s_lshl_b32 s33, s33, 1\ns_and_b32 s59, s30, 1\ns_add_u32 s33, s33, s59\ns_mul_i32 s59, s33, 5120\ns_add_u32 s59, s59, {WS_PX}")
        poll(vm, V_T + 3, 8)
        P = XF
        A("s_add_u32 s39, s59, s37")
        for f in range(8):
            A(f"buffer_load_dwordx4 v[{P+f*4}:{P+f*4+3}], v{V_L16}, {S_WS}, s39 offen sc1")
            if f < 7: A("s_add_u32 s39, s39, 81920")
        lab8 = A.newlabel("Lv")
        A(f"s_cmp_lg_u32 s29, 0\ns_cbranch_scc1 {lab8}")
        for f in range(8):
            A(f"buffer_load_dwordx4 v[{P+32+f*4}:{P+32+f*4+3}], v{V_L16+1}, {S_WS}, s59 offen sc1")
            if f < 7: A("s_add_u32 s59, s59, 81920")
        A.label(lab8)
        A(f"v_lshlrev_b32 v{V_T+3}, 3, v2\ns_add_u32 s33, s37, {ssb}\nv_add_u32 v{V_T+3}, s33, v{V_T+3}")
        A("s_mov_b32 s62, 0x00003f80\ns_mov_b32 s63, 0x3f800000")
        A(f"s_mov_b32 s56, {hx(-LOG2E)}\ns_mov_b32 s57, {hx(-LOG2E)}")
        A("s_waitcnt vmcnt(0)")
        SR = ACC + 8
        A(f"ds_read_b64_tr_b16 v[{SR}:{SR+1}], v{V_T+3}\nds_read_b64_tr_b16 v[{SR+2}:{SR+3}], v{V_T+3} offset:512")
        O = ACC + 16
        for f in range(8):
            for k in range(4):
                for h in range(2):
                    d = O + k * 2 + h
                    A(f"v_dot2_f32_bf16 v{d}, v{P+f*4+k}, s{62+h}, " + ("0" if f == 0 else f"v{d}"))
        def fin(o, sr, xr, n, outr):
            t1, t2 = ACC + 32, ACC + 48
            for k in range(n):
                A(f"v_cvt_pk_bf16_f32 v{t1+k}, v{o+2*k}, v{o+2*k+1}")
            for k in range(n):
                A(f"v_lshlrev_b32 v{o+2*k}, 16, v{t1+k}\nv_and_b32 v{o+2*k+1}, 0xffff0000, v{t1+k}")
                A(f"v_pk_mul_f32 v[{t2+2*k}:{t2+2*k+1}], v[{o+2*k}:{o+2*k+1}], s[56:57]")
            for i in range(2 * n): A(f"v_exp_f32 v{t2+i}, v{t2+i}")
            for k in range(n): A(f"v_pk_add_f32 v[{t2+2*k}:{t2+2*k+1}], v[{t2+2*k}:{t2+2*k+1}], 1.0 op_sel_hi:[1,0]")
            for i in range(2 * n): A(f"v_rcp_f32 v{t2+i}, v{t2+i}")
            for k in range(n):
                A(f"v_pk_mul_f32 v[{o+2*k}:{o+2*k+1}], v[{o+2*k}:{o+2*k+1}], v[{t2+2*k}:{t2+2*k+1}]")
                A(f"v_cvt_pk_bf16_f32 v{t1+k}, v{o+2*k}, v{o+2*k+1}")
                A(f"v_lshlrev_b32 v{o+2*k}, 16, v{t1+k}\nv_and_b32 v{o+2*k+1}, 0xffff0000, v{t1+k}")
                A(f"v_lshlrev_b32 v{t2+2*k}, 16, v{sr+k}\nv_and_b32 v{t2+2*k+1}, 0xffff0000, v{sr+k}")
                A(f"v_pk_mul_f32 v[{o+2*k}:{o+2*k+1}], v[{o+2*k}:{o+2*k+1}], v[{t2+2*k}:{t2+2*k+1}]")
                A(f"v_cvt_pk_bf16_f32 v{t1+k}, v{o+2*k}, v{o+2*k+1}")
                A(f"v_lshlrev_b32 v{o+2*k}, 16, v{t1+k}\nv_and_b32 v{o+2*k+1}, 0xffff0000, v{t1+k}")
                A(f"v_lshlrev_b32 v{t2+2*k}, 16, v{xr+k}\nv_and_b32 v{t2+2*k+1}, 0xffff0000, v{xr+k}")
                A(f"v_pk_add_f32 v[{o+2*k}:{o+2*k+1}], v[{o+2*k}:{o+2*k+1}], v[{t2+2*k}:{t2+2*k+1}]")
                A(f"v_cvt_pk_bf16_f32 v{outr+k}, v{o+2*k}, v{o+2*k+1}")
        A("s_waitcnt lgkmcnt(0)")
        OUTR = ACC + 64
        fin(O, SR, XR, 4, OUTR)
        A(f"buffer_store_dwordx2 v[{OUTR}:{OUTR+1}], v{V_T+2}, {S_OUT}, s61 offen\nbuffer_store_dwordx2 v[{OUTR+2}:{OUTR+3}], v{V_T+2}, {S_OUT}, s61 offen offset:32")
        lab9 = A.newlabel("LBw")
        A(f"s_cmp_lg_u32 s29, 0\ns_cbranch_scc1 {lab9}")
        Q = P + 32
        A(f"ds_read_b64_tr_b16 v[{SR+4}:{SR+5}], v{V_T+3} offset:4096")
        for f in range(1, 8):
            for h in range(2): A(f"v_pk_add_f32 v[{Q+2*h}:{Q+2*h+1}], v[{Q+2*h}:{Q+2*h+1}], v[{Q+f*4+2*h}:{Q+f*4+2*h+1}]")
        A("s_waitcnt lgkmcnt(0)")
        fin(Q, SR + 4, XR + 4, 2, OUTR + 4)
        A(f"buffer_store_dwordx2 v[{OUTR+4}:{OUTR+5}], v{V_T+2}, {S_OUT}, 0 offen offset:256")
        A.label(lab9)
    NI = 55
    def a_step(i):
        if i < 18: return i
        if 37 <= i < 55: return i - 19
        return None
    def b_step(i):
        if 9 <= i < 27: return i - 9
        if 46 <= i < 64: return i - 28
        return None
    dma_plan = {}
    for sl in range(13, 22): dma_plan.setdefault(sl - 3, []).append((sl, "B" if sl - 3 < 18 else "A"))
    for k, sl in enumerate(range(22, 31)): dma_plan.setdefault(37 + k // 2, []).append((sl, "B"))
    for sl in range(31, 36): dma_plan.setdefault(sl + 16, []).append((sl, "B"))
    for grp in "AB":
        vm = VM()
        nst[0] = 0
        if grp == "B": A.label("LB1_B")
        stepf = a_step if grp == "A" else b_step
        if grp == "B":
            for sl in range(13):
                for it in dma_ops(sl): emit(vm, it)
            for st in range(12):
                for it in xl(st): emit(vm, it)
        else:
            for st in range(12):
                for it in xl(st): emit(vm, it)
        late_setup()
        if grp == "B": tile8_offsets(V_D3, 0, 1)
        stamp(grp)
        n = vm_wait(vm, lambda tg: tg[0] == "dma" and tg[1] <= 0)
        if n is not None: A(f"s_waitcnt vmcnt({n})")
        A("s_barrier")
        if grp == "A":
            for tt in range(3):
                for x in tr(0, tt): A(x)
        for i in range(64):
            if i < NI:
                need = a_step(i + 1)
                pred = lambda tg: (need is not None and tg[0] == "dma" and tg[1] <= need) or (i == 24 and tg[0] == "cv") or (i == 38 and grp == "A" and tg[0] == "sst")
                n = vm_wait(vm, pred)
                if n is not None: A(f"s_waitcnt vmcnt({n})")
                A("s_barrier")
            if i in (0, 9, 18, 27, 37, 46, 55): stamp(grp)
            extra = []
            for sl, g in dma_plan.get(i, []):
                if g == grp: extra += dma_ops(sl)
            st = stepf(i); nx = stepf(i + 1)
            if st is not None:
                if st < 18:
                    if st + 12 < 18: extra += xl(st + 12)
                else:
                    k = st - 18
                    if k + 13 <= 17 : pass
                    if 1 <= k <= 5: extra += xl(18 + 12 + k)
                if grp == "A" and i == 38:
                    lab = A.newlabel("Lz")
                    f = flag_store(WS_FS, "s2")[0]
                    extra = [["s_cmp_lg_u32 s29, 0", f"s_cbranch_scc1 {lab}"] + f[:-1] + [f"{lab}:", ("vmx", ("fl", 0))]] + extra
                if grp == "B" and i == 15: extra.append([("call", lambda vm_: tile8_offsets(V_D1, 2, 3))])
                gemm_step(vm, st, extra, nx is None)
            else:
                work = []
                s0 = 18 if grp == "A" else 27
                if s0 <= i < s0 + 9: work += silu_slice(i - s0)
                if i == s0 + 9:
                    work = [[("wait", lambda tg: tg[0] == "hst")]] + flag_store(WS_FH, "s36") + work
                if grp == "A":
                    if i == 22: work = conv_fetch() + work
                    if i == 23: work += conv_addr()
                    if i in (24, 25, 26): work += expand(i - 24)
                    if 27 <= i < 36:
                        c, part = divmod(i - 27, 3)
                        if part == 0 and c > 0: work += conv_epi(c - 1)
                        work += conv_mm(c, part)
                    if i == 36: work += conv_epi(2)
                if (grp == "A" and i == 36) or (grp == "B" and i == 44):
                    work.append([("call", h_poll)])
                    for k in range(4, 13): work += xl(18 + k)
                for it in extra + work: emit(vm, it)
                if nx is not None:
                    for tt in range(3):
                        for x in tr(nx, tt): A(x)
            if (grp == "A" and i == 54) or (grp == "B" and i == 63): break
        stamp(grp)
        g2_epi(vm, grp)
        final(vm, grp)
        stamp(grp)
        if stamps:
            A("s_waitcnt vmcnt(0)")
            stamp(grp)
            A(f"s_lshl_b32 s33, s36, 6\ns_add_u32 s33, s33, {WS_END}\nv_lshlrev_b32 v{V_T}, 2, v2\ns_mov_b64 exec, 0xffff\ns_mov_b32 s18, 0x4000000")
            A(f"buffer_store_dword v1, v{V_T}, {S_WS}, s33 offen")
        A("s_branch LB1_end" if grp == "A" else "s_nop 0")
    A.label("LB1_end")
    return A

def idx_table():
    L = [".p2align 6", "idx_table:"]
    ZERO = 21 * 32 * 2
    for tid in range(256):
        vals = []
        for e in range(16):
            m = 8 * tid + e
            if e >= 11: vals.append(0); continue
            j = 2047 - m
            vals.append(2 * t_index(j) if j >= 0 else ZIDX)
        L.append(".short " + ", ".join(str(x) for x in vals))
    return L
ZIDX = 21 * 64

def build(stamps=False):
    k0 = hazard.fix(gen_k0().L)
    k1 = hazard.fix(gen_k1(stamps).L)
    hdr = open("header.txt").read()
    s = hdr
    s += "; @launch kernel=prep_kernel grid=(256,1,1) block=(256,1,1) lds=40960\n"
    s += "; @launch kernel=main_kernel grid=(256,1,1) block=(512,1,1) lds=163840\n"
    s += '.amdgcn_target "amdgcn-amd-amdhsa--gfx950"\n.text\n'
    s += kernel_head("prep_kernel") + "\n".join(k0) + "\ns_endpgm\n"
    s += kernel_head("main_kernel") + "\n".join(k1) + "\ns_endpgm\n"
    s += "\n".join(idx_table()) + "\n"
    s += '.section .rodata,"a"\n' + kernel_desc("prep_kernel", 256, 96) + kernel_desc("main_kernel", 256, 96)
    return s
if __name__ == "__main__":
    out = sys.argv[1] if len(sys.argv) > 1 else "../exp/v1.s"
    open(out, "w").write(build(stamps="--stamps" in sys.argv))
```

```python
import sys
from asmlib import *
from parts import *
src = open(sys.argv[1]).read()
DG = WS_END - 0x100
def st(slot, wave, sreg_wave, ws="s[16:19]"):
    lab = f"Ldg{slot}"
    return (f"s_cmp_lg_u32 s2, 0\ns_cbranch_scc1 {lab}\ns_cmp_lg_u32 {sreg_wave}, {wave}\ns_cbranch_scc1 {lab}\n"
            f"s_memrealtime s[92:93]\ns_waitcnt lgkmcnt(0)\nv_mov_b32 v250, s92\nv_mov_b32 v251, {DG + slot*4}\ns_nop 4\nbuffer_store_dword v250, v251, {ws}, 0 offen\ns_nop 4\n{lab}:\n")
def mk(fn, a, b):
    t = src
    t = t.replace("LB0_ln:\n", "LB0_ln:\n" + st(0, 3, "s28"))
    t = t.replace("LB0_end:\n", st(1, 3, "s28") + "LB0_end:\n")
    t = t.replace("LB1_B:\n", "LB1_B:\n" + st(2, 4, "s28"))
    t = t.replace("LB1_end:\n", "s_waitcnt vmcnt(0)\n" + st(3, 4, "s28") + "LB1_end:\n")
    k = kernel_head("spin_kernel") + f"""s_cmp_lg_u32 s2, 0
s_cbranch_scc1 Lsp_end
s_load_dwordx2 s[4:5], s[0:1], 112
s_memrealtime s[8:9]
s_waitcnt lgkmcnt(0)
s_add_u32 s4, s4, {DG}
s_addc_u32 s5, s5, 0
s_load_dwordx4 s[12:15], s[4:5], 0
s_waitcnt lgkmcnt(0)
s_sub_u32 s16, s{12+b}, s{12+a}
s_min_u32 s16, s16, 20000
Lsp_loop:
s_memrealtime s[10:11]
s_waitcnt lgkmcnt(0)
s_sub_u32 s17, s10, s8
s_cmp_lt_u32 s17, s16
s_cbranch_scc1 Lsp_loop
Lsp_end:
s_endpgm
"""
    t = t.replace('.amdgcn_target', "; @launch kernel=spin_kernel grid=(1,1,1) block=(64,1,1) lds=0\n" + '.amdgcn_target')
    t = t.replace(".globl prep_kernel", k + ".globl prep_kernel")
    t += kernel_desc("spin_kernel", 8, 32)
    open(fn, "w").write(t)
mk("../exp/dg_none.s", 0, 0); mk("../exp/dg_k0.s", 0, 1); mk("../exp/dg_gap.s", 1, 2); mk("../exp/dg_k1.s", 2, 3); mk("../exp/dg_all.s", 0, 3)
```
